```python
import torch

def _softmax(x, axis=-1):
    return torch.softmax(x, dim=axis)

def _gelu(x):
    return torch.nn.functional.gelu(x, approximate='tanh')

def _silu(x):
    return torch.nn.functional.silu(x)

def _sigmoid(x):
    return torch.sigmoid(x)

def _layernorm(x, axis=-1, eps=1e-05):
    m = x.mean(dim=axis, keepdim=True)
    v = x.var(dim=axis, keepdim=True, unbiased=False)
    return (x - m) / torch.sqrt(v + eps)

def _scatter_add(tgt, idx, src, axis=0):
    return tgt.clone().index_add_(axis, idx, src)

def _segment_sum(src, seg, n):
    out = torch.zeros((n,) + src.shape[1:], dtype=src.dtype)
    return out.index_add_(0, seg, src)

def _pad(x, pw):
    flat = tuple((v for pair in reversed(pw) for v in pair))
    return torch.nn.functional.pad(x, flat)
kernel_name = 'gated_mix__memory_aug_recurrent_mem_tr__sliding_block__prompt'

def setup_inputs():

    _w = lambda a: (lambda t: t.to(torch.bfloat16) if t.is_floating_point() else t)(torch.as_tensor(a))

    def _A_setup():
        B, S, Dm = (1, 2048, 576)
        H, Dh = (32, 128)
        M, seg = (8, 32)
        seg = min(seg, S)
        S = S // seg * seg
        return {'x': _w((lambda *s: torch.randn(*s, dtype=torch.bfloat16) * 0.05)(B, S, Dm)), 'mem0': _w((lambda *s: torch.randn(*s, dtype=torch.bfloat16) * 1.6)(B, M, Dm)), 'Wq': _w((lambda *s: torch.randn(*s, dtype=torch.bfloat16) * 0.8)(Dm, H, Dh) * Dm ** (-0.5)), 'Wk': _w((lambda *s: torch.randn(*s, dtype=torch.bfloat16) * 0.8)(Dm, H, Dh) * Dm ** (-0.5)), 'Wv': _w((lambda *s: torch.randn(*s, dtype=torch.bfloat16) * 1.6)(Dm, H, Dh) * Dm ** (-0.5)), 'Wo': _w((lambda *s: torch.randn(*s, dtype=torch.bfloat16) * 1.6)(H, Dh, Dm) * (H * Dh) ** (-0.5)), 'seg_len': seg}
    _A_in = _A_setup()

    def _B_setup():
        B, S, D = (1, 2048, 576)
        return {'x': _w((lambda *s: torch.randn(*s, dtype=torch.bfloat16) * 0.05)(B, S, D)), 'wqkv': _w((lambda *s: torch.randn(*s, dtype=torch.bfloat16) * 1.6)(D, 3 * D)), 'wo': _w((lambda *s: torch.randn(*s, dtype=torch.bfloat16) * 0.05)(D, D))}
    _B_in = _B_setup()
    return {'A_x': _A_in['x'], 'A_mem0': _A_in['mem0'], 'A_Wq': _A_in['Wq'], 'A_Wk': _A_in['Wk'], 'A_Wv': _A_in['Wv'], 'A_Wo': _A_in['Wo'], 'A_seg_len': _A_in['seg_len'], 'B_x': _B_in['x'], 'B_wqkv': _B_in['wqkv'], 'B_wo': _B_in['wo'], 'gate_w': _w((lambda *s: torch.randn(*s, dtype=torch.bfloat16) * 0.05)(576) * 16.0)}

def reference(A_x, A_mem0, A_Wq, A_Wk, A_Wv, A_Wo, A_seg_len, B_x, B_wqkv, B_wo, gate_w):

    def _A_ref(x, mem0, Wq, Wk, Wv, Wo, seg_len):
        B, S, Dm = x.shape
        H, Dh = (Wq.shape[1], Wq.shape[2])
        M = mem0.shape[1]
        scale = Dh ** (-0.5)
        n_seg = S // seg_len
        L = M + seg_len
        idx = torch.arange(L)
        mask = (idx[:, None] < M) | (idx[:, None] >= idx[None, :])
        mem = mem0
        outs = []
        for s in range(n_seg):
            xs = x[:, s * seg_len:(s + 1) * seg_len, :].clone()
            h = torch.concatenate([mem, xs], axis=1)
            q = torch.einsum('btd,dhe->bhte', h, Wq)
            k = torch.einsum('btd,dhe->bhte', h, Wk)
            v = torch.einsum('btd,dhe->bhte', h, Wv)
            scores = torch.einsum('bhqe,bhke->bhqk', q, k) * scale
            scores = torch.where(mask[None, None], scores, -1000000000.0)
            p = _softmax(scores, axis=-1)
            o = torch.einsum('bhqk,bhke->bhqe', p, v)
            o = torch.einsum('bhte,hed->btd', o, Wo)
            mem = o[:, :M, :].clone()
            outs.append(o[:, M:, :])
        return torch.concatenate(outs, axis=1)

    def _B_ref(x, wqkv, wo):
        B, S, D = x.shape
        H = 32
        Dh = D // H
        W = 256
        qkv = (lambda x, *d: x.permute(*d))((x @ wqkv).reshape(B, S, 3, H, Dh), 2, 0, 3, 1, 4)
        q, k, v = (qkv[0], qkv[1], qkv[2])
        scores = torch.einsum('bhqd,bhkd->bhqk', q, k) * Dh ** (-0.5)
        idx = torch.arange(S)
        mask = (idx[:, None] - idx[None, :] >= 0) & (idx[:, None] - idx[None, :] < W)
        scores = torch.where(mask[None, None], scores, -1000000000.0)
        p = _softmax(scores, axis=-1)
        o = torch.einsum('bhqk,bhkd->bhqd', p, v)
        return (lambda x, *d: x.permute(*d))(o, 0, 2, 1, 3).reshape(B, S, D) @ wo
    x = A_x
    g = _sigmoid((x * gate_w).sum(-1, keepdims=True))
    a = _A_ref(x, A_mem0, A_Wq, A_Wk, A_Wv, A_Wo, A_seg_len)
    b = _B_ref(x, B_wqkv, B_wo)
    return g * a + (1 - g) * b
```

```python
from gen import *
from chain import round_bf16_pair, xlane_reduce
import struct
def fbits(x): return struct.unpack("<I", struct.pack("<f", x))[0]
LOG2E = 1.4426950408889634

def softmax_regs(a, S, tm, tt, scale_s, log2e_s, prep=None):
    for p in range(0, len(S), 2):
        x, y = S[p], S[p + 1]
        round_bf16_pair(a, x, y, tt)
        a("v_mul_f32 v%d, %s, v%d" % (x, scale_s, x))
        a("v_mul_f32 v%d, %s, v%d" % (y, scale_s, y))
        round_bf16_pair(a, x, y, tt)
    if prep: prep()
    a("v_max_f32 v%d, v%d, v%d" % (tm, S[0], S[1]))
    for p in range(2, len(S), 2):
        a("v_max3_f32 v%d, v%d, v%d, v%d" % (tm, tm, S[p], S[p + 1]))
    xlane_reduce(a, tm, tt, "v_max_f32")
    for x in S:
        a("v_sub_f32 v%d, v%d, v%d" % (x, x, tm))
        a("v_mul_f32 v%d, %s, v%d" % (x, log2e_s, x))
        a("v_exp_f32 v%d, v%d" % (x, x))
    a("s_nop 0")
    a("v_add_f32 v%d, v%d, v%d" % (tm, S[0], S[1]))
    for x in S[2:]:
        a("v_add_f32 v%d, v%d, v%d" % (tm, tm, x))
    xlane_reduce(a, tm, tt, "v_add_f32")
    a("v_rcp_f32 v%d, v%d" % (tm, tm))
    a("s_nop 0")
    for x in S:
        a("v_mul_f32 v%d, v%d, v%d" % (x, x, tm))

def lane_consts(a):
    a("v_and_b32 v1, 63, v0")
    a("v_lshrrev_b32 v2, 4, v1")
    a("v_and_b32 v3, 15, v1")
    a("v_and_b32 v4, 7, v1")
    a("v_lshlrev_b32 v5, 2, v2")
    for r in range(4):
        a("v_add_u32 v6, %d, v5" % r)
        a("v_cmp_le_u32 s[%d:%d], v6, v3" % (76 + 2 * r, 77 + 2 * r))
    a("s_mov_b32 s72, 0")
    a("s_mov_b32 s73, -1")
    a("s_mov_b32 s74, 0xff800000")

def attnA_task(a, sc_ld=""):
    a("s_lshr_b32 s37, s36, 5")
    a("s_and_b32 s38, s36, 31")
    a("v_lshlrev_b32 v8, 13, v3")
    a("v_lshl_add_u32 v8, v2, 4, v8")
    a("s_lshl_b32 s64, s37, 18")
    a("s_lshl_b32 s65, s38, 8")
    a("s_add_u32 s64, s64, s65")
    a("s_add_u32 s65, s64, 0x20000")
    Q = 16; K = 48
    for qt in range(2):
        for ks in range(4):
            a("buffer_load_dwordx4 %s, v8, s[40:43], s%d offen offset:%d" % (vr(Q + 16 * qt + 4 * ks, 4), 64 + qt, ks * 64))
    for kt in range(2):
        for ks in range(4):
            a("buffer_load_dwordx4 %s, v8, s[44:47], s%d offen offset:%d" % (vr(K + 16 * (kt + 1) + 4 * ks, 4), 64 + kt, ks * 64))
    a("v_lshlrev_b32 v9, 8, v4")
    a("v_lshl_add_u32 v9, v2, 4, v9")
    a("s_lshl_b32 s66, s36, 11")
    for ks in range(4):
        a("buffer_load_dwordx4 %s, v9, s[52:55], s66 offen offset:%d%s" % (vr(K + 4 * ks, 4), ks * 64, sc_ld))
    V = 96
    a("v_lshlrev_b32 v10, 12, v3")
    a("v_lshl_add_u32 v10, v2, 3, v10")
    a("s_lshl_b32 s67, s38, 19")
    a("s_lshl_b32 s68, s37, 6")
    a("s_add_u32 s67, s67, s68")
    for et in range(8):
        a("buffer_load_dwordx2 %s, v10, s[48:51], s67 offen" % vr(V + 8 * et, 2))
        a("buffer_load_dwordx2 %s, v10, s[48:51], s67 offen offset:32" % vr(V + 8 * et + 2, 2))
        a("s_add_u32 s67, s67, 0x10000")
    a("v_and_b32 v11, 1, v2")
    a("v_lshlrev_b32 v11, 3, v11")
    a("v_lshl_add_u32 v11, v3, 4, v11")
    for et in range(8):
        a("buffer_load_dwordx2 %s, v11, s[56:59], s66 offen offset:%d%s" % (vr(V + 8 * et + 4, 2), et * 256, sc_ld))
    a("s_waitcnt vmcnt(0)")
    S = 160
    for qt in range(2):
        for kt in range(3):
            c = vr(S + (qt * 3 + kt) * 4, 4)
            for ks in range(4):
                a("v_mfma_f32_16x16x32_bf16 %s, %s, %s, %s" % (c, vr(K + 16 * kt + 4 * ks, 4), vr(Q + 16 * qt + 4 * ks, 4), c if ks else "0"))
    a("s_nop 7\ns_nop 1")
    a("s_mov_b32 s68, 0x%x" % fbits(128 ** -0.5))
    a("s_mov_b32 s69, 0x%x" % fbits(LOG2E))
    a("v_mov_b32 v12, s74")
    P = 190
    for qt in range(2):
        regs = [S + qt * 12 + r for r in range(12)]
        def prep(qt=qt, regs=regs):
            for r in range(4):
                a("v_cndmask_b32 v%d, v%d, v12, s[72:73]" % (regs[r], regs[r]))
            if qt == 0:
                for r in range(4):
                    a("v_cndmask_b32 v%d, v12, v%d, s[%d:%d]" % (regs[4 + r], regs[4 + r], 76 + 2 * r, 77 + 2 * r))
                    a("v_mov_b32 v%d, v12" % regs[8 + r])
            else:
                for r in range(4):
                    a("v_cndmask_b32 v%d, v12, v%d, s[%d:%d]" % (regs[8 + r], regs[8 + r], 76 + 2 * r, 77 + 2 * r))
        softmax_regs(a, regs, 13, 14, "s68", "s69", prep)
        pb = P + 8 * qt
        a("v_cvt_pk_bf16_f32 v%d, v%d, v%d" % (pb, regs[4], regs[5]))
        a("v_cvt_pk_bf16_f32 v%d, v%d, v%d" % (pb + 1, regs[6], regs[7]))
        a("v_cvt_pk_bf16_f32 v%d, v%d, v%d" % (pb + 2, regs[8], regs[9]))
        a("v_cvt_pk_bf16_f32 v%d, v%d, v%d" % (pb + 3, regs[10], regs[11]))
        a("v_cvt_pk_bf16_f32 v%d, v%d, v%d" % (pb + 4, regs[0], regs[1]))
        a("v_cvt_pk_bf16_f32 v%d, v%d, v%d" % (pb + 5, regs[2], regs[3]))
    a("s_nop 1")
    O = 16
    for qt in range(2):
        for et in range(8):
            c = vr(O + (qt * 8 + et) * 4, 4)
            a("v_mfma_f32_16x16x32_bf16 %s, %s, %s, 0" % (c, vr(V + 8 * et, 4), vr(P + 8 * qt, 4)))
    a("s_nop 7")
    for qt in range(2):
        for et in range(8):
            c = vr(O + (qt * 8 + et) * 4, 4)
            a("v_mfma_f32_16x16x16_bf16 %s, %s, %s, %s" % (c, vr(V + 8 * et + 4, 2), vr(P + 8 * qt + 4, 2), c))
    a("s_nop 7\ns_nop 3")
    a("v_lshlrev_b32 v8, 13, v3")
    a("v_lshl_add_u32 v8, v2, 3, v8")
    for qt in range(2):
        for et in range(8):
            c = O + (qt * 8 + et) * 4
            a("v_cvt_pk_bf16_f32 v%d, v%d, v%d" % (c, c, c + 1))
            a("v_cvt_pk_bf16_f32 v%d, v%d, v%d" % (c + 1, c + 2, c + 3))
            a("buffer_store_dwordx2 %s, v8, s[60:63], s%d offen offset:%d" % (vr(c, 2), 64 + qt, et * 32))

def attnB_task(a):
    a("s_and_b32 s38, s36, 31")
    a("s_lshr_b32 s37, s36, 5")
    a("v_mul_u32_u24 v8, 2304, v3")
    a("v_lshl_add_u32 v8, v2, 4, v8")
    a("s_mul_i32 s64, s38, 36")
    a("v_add_u32 v8, s64, v8")
    a("s_mul_i32 s64, s37, %d" % (32 * 2304))
    a("s_add_u32 s65, s64, %d" % (16 * 2304))
    Q = 16
    a("buffer_load_dwordx4 v[16:19], v8, s[40:43], s64 offen")
    a("buffer_load_dwordx4 v[20:23], v8, s[40:43], s65 offen")
    a("s_sub_u32 s66, s64, %d" % (256 * 2304 - 1152))
    a("v_add_u32 v9, s66, v8")
    KF = 24
    for kt in range(18):
        a("buffer_load_dwordx4 %s, v9, s[40:43], 0 offen" % vr(KF + 4 * kt, 4))
        if kt < 17:
            a("v_add_u32 v9, %d, v9" % (16 * 2304))
    a("v_cmp_gt_u32 s[84:85], 3, v2")
    a("v_cmp_gt_u32 s[86:87], 2, v2")
    a("s_waitcnt vmcnt(18)")
    for qb_ in (16, 20):
        a("v_cndmask_b32 v%d, 0, v%d, s[84:85]" % (qb_, qb_))
        for r in range(1, 4):
            a("v_cndmask_b32 v%d, 0, v%d, s[86:87]" % (qb_ + r, qb_ + r))
    a("s_waitcnt vmcnt(0)")
    S = 96
    for qt in range(2):
        for j in range(17):
            kt = j + qt
            a("v_mfma_f32_16x16x32_bf16 %s, %s, %s, 0" % (vr(S + (qt * 17 + j) * 4, 4), vr(KF + 4 * kt, 4), vr(Q + 4 * qt, 4)))
    a("s_nop 7\ns_nop 7")
    a("s_mul_i32 s64, s38, 18")
    a("v_add_u32 v10, s64, v3")
    a("v_lshlrev_b32 v10, 12, v10")
    a("v_lshl_add_u32 v10, v2, 3, v10")
    a("s_lshl_b32 s64, s37, 6")
    a("s_sub_u32 s64, s64, 512")
    a("v_add_u32 v10, s64, v10")
    a("v_add_u32 v11, 0x10000, v10")
    VF = 24
    for dt in range(2):
        for u in range(9):
            a("buffer_load_dwordx2 %s, v%d, s[44:47], 0 offen offset:%d" % (vr(VF + (dt * 9 + u) * 4, 2), 10 + dt, u * 64))
            a("buffer_load_dwordx2 %s, v%d, s[44:47], 0 offen offset:%d" % (vr(VF + (dt * 9 + u) * 4 + 2, 2), 10 + dt, u * 64 + 32))
    a("s_mov_b32 s68, 0x%x" % fbits(18 ** -0.5))
    a("s_mov_b32 s69, 0x%x" % fbits(LOG2E))
    a("v_mov_b32 v12, s74")
    a("s_lshl_b32 s70, s37, 1")
    for qt in range(2):
        regs = [S + qt * 68 + r for r in range(68)]
        def prep(qt=qt, regs=regs):
            for r in range(4):
                a("v_cndmask_b32 v%d, v%d, v12, s[%d:%d]" % (regs[r], regs[r], 76 + 2 * r, 77 + 2 * r))
            for r in range(4):
                a("v_cndmask_b32 v%d, v12, v%d, s[%d:%d]" % (regs[64 + r], regs[64 + r], 76 + 2 * r, 77 + 2 * r))
            for j in range(17):
                kt = j + qt
                if kt >= 16: continue
                a("s_add_u32 s71, s70, %d" % kt)
                a("s_cmp_lt_u32 s71, 16")
                a("s_cselect_b32 s71, s74, 0")
                for r in range(4):
                    a("v_add_f32 v%d, s71, v%d" % (regs[4 * j + r], regs[4 * j + r]))
        softmax_regs(a, regs, 13, 14, "s68", "s69", prep)
        for j in range(17):
            b = regs[4 * j]
            a("v_cvt_pk_bf16_f32 v%d, v%d, v%d" % (b, b, b + 1))
            a("v_cvt_pk_bf16_f32 v%d, v%d, v%d" % (b + 1, b + 2, b + 3))
    a("s_waitcnt vmcnt(0)")
    O = 232
    for qt in range(2):
        regs = [S + qt * 68 + r for r in range(68)]
        for u in range(9):
            j0, j1 = 2 * u - qt, 2 * u + 1 - qt
            if j0 < 0:
                b = regs[4 * j1]
                a("v_mov_b32 v%d, v%d" % (b + 2, b))
                a("v_mov_b32 v%d, v%d" % (b + 3, b + 1))
                a("v_mov_b32 v%d, 0" % b)
                a("v_mov_b32 v%d, 0" % (b + 1))
                fr = b
            elif j1 > 16:
                b = regs[4 * j0]
                a("v_mov_b32 v%d, 0" % (b + 2))
                a("v_mov_b32 v%d, 0" % (b + 3))
                fr = b
            else:
                b = regs[4 * j0]; b1 = regs[4 * j1]
                a("v_mov_b32 v%d, v%d" % (b + 2, b1))
                a("v_mov_b32 v%d, v%d" % (b + 3, b1 + 1))
                fr = b
            a("s_nop 1")
            for dt in range(2):
                c = vr(O + (qt * 2 + dt) * 4, 4)
                a("v_mfma_f32_16x16x32_bf16 %s, %s, %s, %s" % (c, vr(VF + (dt * 9 + u) * 4, 4), vr(fr, 4), c if u else "0"))
    a("s_nop 7\ns_nop 3")
    a("v_mul_u32_u24 v8, 1152, v3")
    a("v_lshl_add_u32 v8, v2, 3, v8")
    a("s_mul_i32 s64, s38, 36")
    a("v_add_u32 v8, s64, v8")
    a("s_mul_i32 s64, s37, %d" % (32 * 1152))
    a("s_add_u32 s65, s64, %d" % (16 * 1152))
    for qt in range(2):
        c = O + qt * 8
        a("v_cvt_pk_bf16_f32 v%d, v%d, v%d" % (c, c, c + 1))
        a("v_cvt_pk_bf16_f32 v%d, v%d, v%d" % (c + 1, c + 2, c + 3))
        a("v_cvt_pk_bf16_f32 v%d, v%d, v%d" % (c + 4, c + 4, c + 5))
        a("buffer_store_dwordx2 %s, v8, s[48:51], s%d offen" % (vr(c, 2), 64 + qt))
    a("s_mov_b32 exec_lo, 0xffff\ns_mov_b32 exec_hi, 0")
    for qt in range(2):
        c = O + qt * 8
        a("buffer_store_dword v%d, v8, s[48:51], s%d offen offset:32" % (c + 4, 64 + qt))
    a("s_mov_b64 exec, -1")

def gate_task(a):
    srd(a, 40, 8, 2048 * 1152)
    srd(a, 44, 28, 1152)
    srd(a, 48, 34, 8192, WS_G)
    a("v_lshrrev_b32 v8, 3, v1")
    a("v_mul_u32_u24 v9, 144, v4")
    a("v_mul_u32_u24 v10, 1152, v8")
    a("v_add_u32 v10, v10, v9")
    a("s_mul_i32 s64, s36, %d" % (8 * 1152))
    for c in range(9):
        a("buffer_load_dwordx4 %s, v10, s[40:43], s64 offen offset:%d" % (vr(16 + 4 * c, 4), c * 16))
        a("buffer_load_dwordx4 %s, v9, s[44:47], 0 offen offset:%d" % (vr(52 + 4 * c, 4), c * 16))
    a("v_mov_b32 v12, 0")
    a("s_waitcnt vmcnt(0)")
    for d in range(36):
        x, w = 16 + d, 52 + d
        a("v_lshlrev_b32 v13, 16, v%d" % x)
        a("v_lshlrev_b32 v14, 16, v%d" % w)
        a("v_mul_f32 v13, v13, v14")
        a("v_and_b32 v14, 0xffff0000, v%d" % x)
        a("v_and_b32 v15, 0xffff0000, v%d" % w)
        a("v_mul_f32 v14, v14, v15")
        round_bf16_pair(a, 13, 14, 15)
        a("v_add_f32 v12, v12, v13")
        a("v_add_f32 v12, v12, v14")
    for off in (0x041F, 0x081F, 0x101F):
        a("ds_swizzle_b32 v13, v12 offset:0x%x" % off)
        a("s_waitcnt lgkmcnt(0)")
        a("v_add_f32 v12, v12, v13")
    a("v_mov_b32 v13, 0")
    round_bf16_pair(a, 12, 13, 15)
    a("v_mul_f32 v12, 0x%x, v12" % fbits(-LOG2E))
    a("v_exp_f32 v12, v12")
    a("s_nop 0")
    a("v_add_f32 v12, 1.0, v12")
    a("v_rcp_f32 v12, v12")
    a("s_nop 0")
    a("v_mov_b32 v13, 0")
    round_bf16_pair(a, 12, 13, 15)
    a("v_lshlrev_b32 v8, 2, v8")
    a("s_lshl_b32 s64, s36, 5")
    a("buffer_store_dword v12, v8, s[48:51], s64 offen")

def k3(a):
    name = "k3_kernel"
    kernel_begin(a, name)
    NB = 512 + 512 + 64
    a("s_cmp_ge_u32 s2, %d" % NB)
    a("s_cbranch_scc1 K3_done")
    load_args(a)
    lane_consts(a)
    a("v_lshrrev_b32 v7, 6, v0")
    a("s_nop 0")
    a("v_readfirstlane_b32 s39, v7")
    a("s_lshl_b32 s36, s2, 2")
    a("s_add_u32 s36, s36, s39")
    a("s_cmp_ge_u32 s2, 512")
    a("s_cbranch_scc1 K3_B")
    srd(a, 40, 34, 16 * MB, WS_QA)
    srd(a, 44, 34, 16 * MB, WS_KA)
    srd(a, 48, 34, 16 * MB, WS_VTA)
    srd(a, 52, 34, 4 * MB, WS_KM)
    srd(a, 56, 34, 4 * MB, WS_VMT)
    srd(a, 60, 34, 16 * MB, WS_OA)
    attnA_task(a)
    a("s_branch K3_done")
    a.lab("K3_B")
    a("s_cmp_ge_u32 s2, 1024")
    a("s_cbranch_scc1 K3_G")
    a("s_sub_u32 s36, s36, 2048")
    srd(a, 40, 34, 2048 * 2304, WS_QKB)
    srd(a, 44, 34, 608 * 4096, WS_VTB)
    srd(a, 48, 34, 2048 * 1152, WS_OB)
    attnB_task(a)
    a("s_branch K3_done")
    a.lab("K3_G")
    a("s_sub_u32 s36, s36, 4096")
    gate_task(a)
    a.lab("K3_done")
    a("s_endpgm")
    return name, NB, 0

def k4(a):
    name = "k4_kernel"
    kernel_begin(a, name)
    NB = 32 * 6
    a("s_cmp_ge_u32 s2, %d" % NB)
    a("s_cbranch_scc1 K4_done")
    load_args(a)
    a("s_and_b32 s37, s2, 31")
    a("s_lshr_b32 s38, s2, 5")
    a("s_mul_i32 s39, s37, %d" % (64 * 1152))
    a("s_add_u32 s39, s39, 0x%x" % WS_OB)
    a("s_add_u32 s40, s34, s39")
    a("s_addc_u32 s41, s35, 0")
    a("s_mov_b32 s42, %d" % (64 * 1152))
    a("s_mov_b32 s43, 0x00020000")
    a("s_mul_i32 s39, s38, 192")
    a("s_add_u32 s44, s26, s39")
    a("s_addc_u32 s45, s27, 0")
    a("s_sub_u32 s46, %d, s39" % (576 * 1152))
    a("s_mov_b32 s47, 0x00020000")
    gb = Gemm(2, 3, 576, 1152, 1152, True)
    gb.setup(a, 1)
    gb.run(a)
    SV = 200
    for r in range(24):
        a("v_mov_b32 v%d, v%d" % (SV + r, gb.acc + r))
    a("s_lshl_b32 s39, s37, 19")
    a("s_add_u32 s39, s39, 0x%x" % WS_OA)
    a("s_add_u32 s40, s34, s39")
    a("s_addc_u32 s41, s35, 0")
    a("s_mov_b32 s42, %d" % (64 * 8192))
    a("s_mul_i32 s39, s38, 192")
    a("s_add_u32 s44, s18, s39")
    a("s_addc_u32 s45, s19, 0")
    a("s_sub_u32 s46, %d, s39" % (4096 * 1152))
    ga = Gemm(2, 3, 4096, 8192, 1152, True)
    ga.setup(a, 1)
    ga.run(a)
    srd(a, 52, 34, 8192, WS_G)
    a("v_lshrrev_b32 v1, 7, v0")
    a("v_and_b32 v2, 15, v0")
    a("v_lshl_add_u32 v1, v1, 5, v2")
    a("v_lshlrev_b32 v1, 2, v1")
    a("s_lshl_b32 s39, s37, 8")
    a("buffer_load_dword v240, v1, s[52:55], s39 offen")
    a("buffer_load_dword v241, v1, s[52:55], s39 offen offset:64")
    a("s_waitcnt vmcnt(0)")
    a("v_sub_f32 v242, 1.0, v240")
    a("v_sub_f32 v243, 1.0, v241")
    round_bf16_pair(a, 242, 243, 244)
    for i in range(2):
        for j in range(3):
            c = ga.acc + 4 * (i * 3 + j); b = SV + 4 * (i * 3 + j)
            for p in (0, 2):
                round_bf16_pair(a, c + p, c + p + 1, 244)
                round_bf16_pair(a, b + p, b + p + 1, 244)
                for q in (p, p + 1):
                    a("v_mul_f32 v%d, v%d, v%d" % (c + q, c + q, 240 + i))
                    a("v_mul_f32 v%d, v%d, v%d" % (b + q, b + q, 242 + i))
                round_bf16_pair(a, c + p, c + p + 1, 244)
                round_bf16_pair(a, b + p, b + p + 1, 244)
                for q in (p, p + 1):
                    a("v_add_f32 v%d, v%d, v%d" % (c + q, c + q, b + q))
    a("s_mul_i32 s39, s37, %d" % (64 * 1152))
    a("s_mul_i32 s52, s38, 192")
    a("s_add_u32 s39, s39, s52")
    a("s_add_u32 s52, s30, s39")
    a("s_addc_u32 s53, s31, 0")
    a("s_sub_u32 s54, %d, s39" % (2048 * 1152))
    a("s_mov_b32 s55, 0x00020000")
    ga.store_bf16(a, 52, 1152, 1)
    a.lab("K4_done")
    a("s_endpgm")
    return name, NB, 2 * ga.stage
```

```python
from gen import *

L_WO   = 0
L_MEM  = 147456
L_SP   = L_MEM + 9216
L_O    = L_SP + 5120
SCALE_A = 128 ** -0.5

def wfrag(f):
    if f < 64:
        return ar(4 * f, 4)
    return vr(80 + 4 * (f - 64), 4)

def fidx(mat, t, kk):
    return kk * 6 + mat * 2 + t

def k0(a):
    name = "k0_kernel"
    kernel_begin(a, name)
    NB = 64
    a("s_cmp_ge_u32 s2, %d" % NB)
    a("s_cbranch_scc1 K0_done")
    load_args(a)
    srd(a, 40, 34, 65 * 9216, WS_MEM)
    srd(a, 44, 34, 2 * 72 * 32 * 256, WS_PART)
    a("v_mov_b32 v4, -1\nv_mov_b32 v5, -1\nv_mov_b32 v6, -1\nv_mov_b32 v7, -1")
    a("s_add_u32 s36, s2, 1")
    a("s_mul_i32 s36, s36, 9216")
    a("v_lshlrev_b32 v1, 4, v0")
    a("buffer_store_dwordx4 v[4:7], v1, s[40:43], s36 offen")
    a("v_add_u32 v2, 4096, v1")
    a("buffer_store_dwordx4 v[4:7], v2, s[40:43], s36 offen")
    a("v_add_u32 v2, 8192, v1")
    a("v_cmp_gt_u32 vcc, 64, v0")
    a("s_and_saveexec_b64 s[38:39], vcc")
    a("buffer_store_dwordx4 v[4:7], v2, s[40:43], s36 offen")
    a("s_mov_b64 exec, s[38:39]")
    a("s_mul_i32 s36, s2, 18432")
    for i in range(4):
        a("buffer_store_dwordx4 v[4:7], v1, s[44:47], s36 offen" )
        a("s_add_u32 s36, s36, 4096")
    a("v_cmp_gt_u32 vcc, 128, v0")
    a("s_and_saveexec_b64 s[38:39], vcc")
    a("buffer_store_dwordx4 v[4:7], v1, s[44:47], s36 offen")
    a("s_mov_b64 exec, s[38:39]")
    a("s_cmp_lg_u32 s2, 0")
    a("s_cbranch_scc1 K0_done")
    srd(a, 48, 10, 9216)
    for i in range(3):
        a("v_add_u32 v2, %d, v0" % (256 * i))
        a("v_and_b32 v3, 7, v2")
        a("v_lshrrev_b32 v8, 3, v2")
        a("v_mul_u32_u24 v9, 1152, v3")
        a("v_lshl_add_u32 v9, v8, 4, v9")
        a("v_lshlrev_b32 v10, 4, v2")
        if i == 2:
            a("v_cmp_gt_u32 vcc, 64, v0")
            a("s_and_saveexec_b64 s[38:39], vcc")
        a("buffer_load_dwordx4 v[12:15], v9, s[48:51], 0 offen")
        a("s_waitcnt vmcnt(0)")
        a("buffer_store_dwordx4 v[12:15], v10, s[40:43], 0 offen")
        if i == 2:
            a("s_mov_b64 exec, s[38:39]")
    a.lab("K0_done")
    a("s_endpgm")
    return name, NB, 0

def chain_prologue(a):
    a("v_and_b32 v1, 63, v0")
    a("v_lshrrev_b32 v2, 4, v1")
    a("v_and_b32 v3, 15, v1")
    a("v_and_b32 v4, 7, v1")
    a("v_lshrrev_b32 v22, 6, v0")
    a("s_nop 0")
    a("v_readfirstlane_b32 s37, v22")
    RS = 288
    a("v_lshrrev_b32 v5, 4, v0")
    a("v_and_b32 v6, 15, v0")
    a("v_lshlrev_b32 v7, 13, v5")
    a("v_lshl_add_u32 v7, v6, 4, v7")
    a("v_mul_u32_u24 v8, %d, v5" % RS)
    a("v_lshl_add_u32 v8, v6, 4, v8")
    a("v_lshlrev_b32 v9, 3, v2")
    a("v_lshrrev_b32 v10, 2, v3")
    a("v_add_u32 v9, v9, v10")
    a("v_mul_u32_u24 v9, %d, v9" % RS)
    a("v_and_b32 v10, 3, v3")
    a("v_lshl_add_u32 v9, v10, 3, v9")
    a("v_lshl_add_u32 v9, v22, 6, v9")
    a("s_lshl_b32 s38, s36, 8")
    for mat in range(3):
        base = 12 + 2 * mat
        a("s_add_u32 s40, s%d, s38" % base)
        a("s_addc_u32 s41, s%d, 0" % (base + 1))
        a("s_sub_u32 s42, %d, s38" % (576 * 8192))
        a("s_mov_b32 s43, 0x00020000")
        for half in range(2):
            a("s_barrier")
            for b in range(3):
                for i in range(6):
                    r = b * 6 + i
                    a("s_mov_b32 s39, 0x%x" % ((half * 288 + r * 16) * 8192))
                    a("buffer_load_dwordx4 %s, v7, s[40:43], s39 offen" % vr(24 + 4 * i, 4))
                a("s_waitcnt vmcnt(0)")
                for i in range(6):
                    r = b * 6 + i
                    off = r * 16 * RS
                    if off < 65536:
                        a("ds_write_b128 v8, %s offset:%d" % (vr(24 + 4 * i, 4), off))
                    else:
                        a("v_add_u32 v10, %d, v8" % off)
                        a("ds_write_b128 v10, %s" % vr(24 + 4 * i, 4))
            a("s_waitcnt lgkmcnt(0)")
            a("s_barrier")
            for kq in range(9):
                kk = half * 9 + kq
                for t in range(2):
                    off = kq * 32 * RS + t * 32
                    f = fidx(mat, t, kk)
                    a("v_add_u32 v10, %d, v9" % off)
                    a("ds_read_b64_tr_b16 v[24:25], v10")
                    a("ds_read_b64_tr_b16 v[26:27], v10 offset:%d" % (4 * RS))
                    a("s_waitcnt lgkmcnt(0)")
                    if f < 64:
                        for r in range(4):
                            a("v_accvgpr_write_b32 a%d, v%d" % (4 * f + r, 24 + r))
                    else:
                        for r in range(4):
                            a("v_mov_b32 v%d, v%d" % (80 + 4 * (f - 64) + r, 24 + r))
    WS2 = 416
    ST = 98304
    a("s_mul_i32 s38, s36, %d" % (128 * 1152))
    a("s_add_u32 s40, s18, s38")
    a("s_addc_u32 s41, s19, 0")
    a("s_mov_b32 s42, %d" % (128 * 1152))
    a("s_mov_b32 s43, 0x00020000")
    a("v_lshlrev_b32 v9, 3, v2")
    a("v_lshrrev_b32 v10, 2, v3")
    a("v_add_u32 v9, v9, v10")
    a("v_mul_u32_u24 v9, %d, v9" % WS2)
    a("v_and_b32 v10, 3, v3")
    a("v_lshl_add_u32 v9, v10, 3, v9")
    a("v_add_u32 v9, %d, v9" % ST)
    a("v_mul_u32_u24 v10, %d, v22" % (32 * WS2))
    a("v_add_u32 v9, v9, v10")
    a("v_lshlrev_b32 v11, 4, v1")
    a("v_lshl_add_u32 v11, v22, 10, v11")
    magic = (1 << 20) // 24 + 1
    for ch in range(3):
        a("s_barrier")
        for b in range(2):
            for i in range(6):
                ii = b * 6 + i
                a("v_add_u32 v5, %d, v0" % (256 * ii))
                a("v_mul_u32_u24 v6, %d, v5" % magic)
                a("v_lshrrev_b32 v6, 20, v6")
                a("v_mul_u32_u24 v7, 24, v6")
                a("v_sub_u32 v5, v5, v7")
                a("v_mul_u32_u24 v7, 1152, v6")
                a("v_lshl_add_u32 v7, v5, 4, v7")
                a("v_mul_u32_u24 v%d, %d, v6" % (48 + i, WS2))
                a("v_lshl_add_u32 v%d, v5, 4, v%d" % (48 + i, 48 + i))
                a("buffer_load_dwordx4 %s, v7, s[40:43], 0 offen offset:%d" % (vr(24 + 4 * i, 4), ch * 384))
            a("s_waitcnt vmcnt(0)")
            for i in range(6):
                a("v_add_u32 v%d, %d, v%d" % (48 + i, ST, 48 + i))
                a("ds_write_b128 v%d, %s" % (48 + i, vr(24 + 4 * i, 4)))
        a("s_waitcnt lgkmcnt(0)")
        a("s_barrier")
        for nt in range(12):
            a("ds_read_b64_tr_b16 %s, v9 offset:%d" % (vr(24 + 4 * nt, 2), nt * 32))
            a("ds_read_b64_tr_b16 %s, v9 offset:%d" % (vr(26 + 4 * nt, 2), nt * 32 + 4 * WS2))
        a("s_waitcnt lgkmcnt(0)")
        a("s_barrier")
        for nt in range(12):
            off = (ch * 12 + nt) * 4096
            a("v_add_u32 v10, %d, v11" % off)
            a("ds_write_b128 v10, %s" % vr(24 + 4 * nt, 4))
    a("s_waitcnt lgkmcnt(0)")
    a("s_barrier")

def chain_consts(a):
    a("v_mul_u32_u24 v5, 2304, v22")
    a("v_lshl_add_u32 v6, v3, 4, v5")
    a("v_add_u32 v6, 2048, v6")
    a("v_lshl_add_u32 v5, v1, 4, v5")
    a("v_add_u32 v7, %d, v5" % L_MEM)
    a("v_add_u32 v8, %d, v6" % L_MEM)
    a("v_lshlrev_b32 v9, 7, v2")
    a("v_lshl_add_u32 v9, v4, 4, v9")
    a("v_add_u32 v9, %d, v9" % L_MEM)
    a("v_lshlrev_b32 v10, 13, v3")
    a("v_lshl_add_u32 v10, v22, 6, v10")
    a("v_lshl_add_u32 v10, v2, 3, v10")
    a("s_lshl_b32 s38, s36, 8")
    a("v_add_u32 v10, s38, v10")
    a("v_lshl_add_u32 v11, v22, 5, v3")
    a("v_lshlrev_b32 v11, 12, v11")
    a("v_lshl_add_u32 v11, v2, 3, v11")
    a("s_lshl_b32 s38, s36, 19")
    a("v_add_u32 v11, s38, v11")
    a("v_lshlrev_b32 v13, 7, v2")
    a("v_lshl_add_u32 v13, v4, 4, v13")
    a("v_add_u32 v13, %d, v13" % L_SP)
    a("v_mul_u32_u24 v12, 1280, v22")
    a("v_add_u32 v12, v12, v13")
    a("v_and_b32 v23, 1, v2")
    a("v_lshlrev_b32 v23, 7, v23")
    a("v_lshl_add_u32 v23, v4, 4, v23")
    a("v_add_u32 v23, %d, v23" % L_SP)
    a("v_lshlrev_b32 v14, 8, v4")
    a("v_lshl_add_u32 v15, v2, 4, v14")
    a("v_add_u32 v15, %d, v15" % L_O)
    a("v_lshl_add_u32 v14, v22, 6, v14")
    a("v_lshl_add_u32 v14, v2, 3, v14")
    a("v_add_u32 v14, %d, v14" % L_O)
    a("v_mul_u32_u24 v16, %d, v22" % (9 * 4096))
    a("v_lshl_add_u32 v16, v1, 4, v16")
    a("v_mul_u32_u24 v17, 18, v22")
    a("v_lshrrev_b32 v18, 1, v2")
    a("v_add_u32 v17, v17, v18")
    a("v_lshlrev_b32 v17, 13, v17")
    a("v_lshl_add_u32 v17, v4, 5, v17")
    a("v_and_b32 v18, 1, v2")
    a("v_lshl_add_u32 v17, v18, 4, v17")
    a("s_lshl_b32 s38, s36, 8")
    a("v_add_u32 v17, s38, v17")
    a("v_lshlrev_b32 v18, 4, v1")
    a("v_lshlrev_b32 v19, 3, v1")
    a("v_lshlrev_b32 v20, 8, v4")
    a("v_lshl_add_u32 v20, v22, 6, v20")
    a("v_lshl_add_u32 v20, v2, 3, v20")
    a("s_lshl_b32 s38, s36, 11")
    a("v_add_u32 v20, s38, v20")
    a("v_lshl_add_u32 v21, v22, 5, v3")
    a("v_lshlrev_b32 v21, 4, v21")
    a("v_lshl_add_u32 v21, v2, 3, v21")
    a("v_add_u32 v21, s38, v21")
    a("s_lshl_b32 s39, s37, 5")
    a("s_add_u32 s39, s39, s36")
    a("s_cmp_ge_u32 s39, 72")
    a("s_cselect_b32 s39, -1, s39")
    srd(a, 40, 34, 65 * 9216, WS_MEM)
    srd(a, 44, 34, 2 * 72 * 32 * 256, WS_PART)
    srd(a, 48, 34, 16 * MB, WS_KA)
    srd(a, 52, 34, 16 * MB, WS_VTA)
    srd(a, 56, 34, 4 * MB, WS_KM)
    srd(a, 60, 34, 4 * MB, WS_VMT)
    a("s_mov_b32 s64, 0")
    a("s_mov_b32 s72, 0")
    a("s_mov_b32 s73, -1")
    a("s_mov_b32 s74, 0x%x" % 0xff800000)

def round_bf16_pair(a, x, y, t):
    a("v_cvt_pk_bf16_f32 v%d, v%d, v%d" % (t, x, y))
    a("v_lshlrev_b32 v%d, 16, v%d" % (x, t))
    a("v_and_b32 v%d, 0xffff0000, v%d" % (y, t))

def xlane_reduce(a, x, t, op):
    a("v_mov_b32 v%d, v%d" % (t, x))
    a("s_nop 1")
    a("v_permlane16_swap_b32 v%d, v%d" % (x, t))
    a("s_nop 1")
    a("%s v%d, v%d, v%d" % (op, x, x, t))
    a("v_mov_b32 v%d, v%d" % (t, x))
    a("s_nop 1")
    a("v_permlane32_swap_b32 v%d, v%d" % (x, t))
    a("s_nop 1")
    a("%s v%d, v%d, v%d" % (op, x, x, t))

def chain_loop(a, sc, nsteps=64, pfx="C"):
    import struct
    scale_bits = struct.unpack("<I", struct.pack("<f", SCALE_A))[0]
    log2e_bits = struct.unpack("<I", struct.pack("<f", 1.4426950408889634))[0]
    top = pfx + "_top"
    a.lab(top)
    a("s_lshl_b32 s65, s64, 18")
    a("s_add_u32 s66, s65, 0x20000")
    a("buffer_load_dwordx2 v[60:61], v10, s[48:51], s65 offen")
    a("buffer_load_dwordx2 v[62:63], v10, s[48:51], s65 offen offset:32")
    a("buffer_load_dwordx2 v[64:65], v10, s[48:51], s66 offen")
    a("buffer_load_dwordx2 v[66:67], v10, s[48:51], s66 offen offset:32")
    a("s_lshl_b32 s65, s64, 6")
    a("s_add_u32 s66, s65, 0x10000")
    a("buffer_load_dwordx2 v[68:69], v11, s[52:55], s65 offen")
    a("buffer_load_dwordx2 v[70:71], v11, s[52:55], s65 offen offset:32")
    a("buffer_load_dwordx2 v[72:73], v11, s[52:55], s66 offen")
    a("buffer_load_dwordx2 v[74:75], v11, s[52:55], s66 offen offset:32")
    a("s_mul_i32 s65, s64, 9216")
    a("s_mov_b32 s67, 0")
    pl = pfx + "_pollm"
    a.lab(pl)
    a("buffer_load_dwordx4 v[48:51], v5, s[40:43], s65 offen sc1")
    a("buffer_load_dwordx4 v[52:55], v5, s[40:43], s65 offen offset:1024 sc1")
    a("buffer_load_dwordx4 v[56:59], v6, s[40:43], s65 offen sc1")
    a("s_waitcnt vmcnt(0)")
    a("v_max3_u32 v76, v48, v49, v50")
    a("v_max3_u32 v76, v76, v51, v52")
    a("v_max3_u32 v76, v76, v53, v54")
    a("v_max3_u32 v76, v76, v55, v56")
    a("v_max3_u32 v76, v76, v57, v58")
    a("v_max_u32 v76, v76, v59")
    a("v_cmp_eq_u32 vcc, -1, v76")
    a("s_add_u32 s67, s67, 1")
    a("s_cmp_ge_u32 s67, 0x100000")
    a("s_cbranch_scc1 %s_pm_done" % pfx)
    a("s_cbranch_vccnz %s" % pl)
    a.lab("%s_pm_done" % pfx)
    a("ds_write_b128 v7, v[48:51]")
    a("ds_write_b128 v7, v[52:55] offset:1024")
    a("ds_write_b128 v8, v[56:59]")
    for r in range(24, 48):
        a("v_mov_b32 v%d, 0" % r)
    a("s_waitcnt lgkmcnt(0)")
    a("s_barrier")
    def fr(kk):
        return vr(48 + 4 * (kk % 3), 4)
    a("ds_read_b128 %s, v9 offset:0" % fr(0))
    a("ds_read_b128 %s, v9 offset:512" % fr(1))
    for kk in range(18):
        if kk + 2 < 18:
            a("ds_read_b128 %s, v9 offset:%d" % (fr(kk + 2), (kk + 2) * 512))
            a("s_waitcnt lgkmcnt(2)")
        elif kk + 1 < 18:
            a("s_waitcnt lgkmcnt(1)")
        else:
            a("s_waitcnt lgkmcnt(0)")
        for mat in range(2):
            for t in range(2):
                c = vr(24 + 8 * mat + 4 * t, 4)
                a("v_mfma_f32_16x16x32_bf16 %s, %s, %s, %s" % (c, wfrag(fidx(mat, t, kk)), fr(kk), c))
    a("s_nop 7")
    a("s_nop 1")
    for b in (24, 32):
        a("v_cvt_pk_bf16_f32 v%d, v%d, v%d" % (b, b, b + 1))
        a("v_cvt_pk_bf16_f32 v%d, v%d, v%d" % (b + 1, b + 2, b + 3))
        a("v_cvt_pk_bf16_f32 v%d, v%d, v%d" % (b + 2, b + 4, b + 5))
        a("v_cvt_pk_bf16_f32 v%d, v%d, v%d" % (b + 3, b + 6, b + 7))
    a("s_lshl_b32 s65, s64, 16")
    a("buffer_store_dwordx2 v[32:33], v20, s[56:59], s65 offen sc1")
    a("buffer_store_dwordx2 v[34:35], v20, s[56:59], s65 offen offset:32 sc1")
    a("s_nop 1")
    a("v_mfma_f32_16x16x32_bf16 v[28:31], v[32:35], v[24:27], 0")
    a("v_mfma_f32_16x16x32_bf16 v[36:39], v[60:63], v[24:27], 0")
    a("v_mfma_f32_16x16x32_bf16 v[76:79], v[64:67], v[24:27], 0")
    a("s_nop 7")
    a("s_nop 1")
    a("s_mov_b32 exec_hi, 0")
    a("ds_write_b128 v12, v[28:31]")
    a("s_mov_b64 exec, -1")
    a("ds_write_b128 v12, v[36:39] offset:256")
    a("ds_write_b128 v12, v[76:79] offset:768")
    a("ds_read_b128 %s, v9 offset:0" % fr(0))
    a("ds_read_b128 %s, v9 offset:512" % fr(1))
    for kk in range(18):
        if kk + 2 < 18:
            a("ds_read_b128 %s, v9 offset:%d" % (fr(kk + 2), (kk + 2) * 512))
            a("s_waitcnt lgkmcnt(2)")
        elif kk + 1 < 18:
            a("s_waitcnt lgkmcnt(1)")
        else:
            a("s_waitcnt lgkmcnt(0)")
        for t in range(2):
            c = vr(40 + 4 * t, 4)
            a("v_mfma_f32_16x16x32_bf16 %s, %s, %s, %s" % (c, fr(kk), wfrag(fidx(2, t, kk)), c))
    a("s_waitcnt lgkmcnt(0)")
    a("s_barrier")
    for (dst, base, off) in ((28, 23, 0), (36, 13, 256), (76, 13, 768)):
        a("ds_read_b128 %s, v%d offset:%d" % (vr(dst, 4), base, off))
        for wv in range(1, 4):
            a("ds_read_b128 %s, v%d offset:%d" % (vr(48 + 4 * (wv - 1), 4), base, off + 1280 * wv))
        a("s_waitcnt lgkmcnt(0)")
        for r in range(4):
            a("v_add_f32 v%d, v%d, v%d" % (dst + r, dst + r, 48 + r))
            a("v_add_f32 v%d, v%d, v%d" % (52 + r, 52 + r, 56 + r))
            a("v_add_f32 v%d, v%d, v%d" % (dst + r, dst + r, 52 + r))
    S = [28, 29, 30, 31, 36, 37, 38, 39, 76, 77, 78, 79]
    a("s_mov_b32 s68, 0x%x" % scale_bits)
    a("s_mov_b32 s69, 0x%x" % log2e_bits)
    for p in range(0, 12, 2):
        x, y = S[p], S[p + 1]
        round_bf16_pair(a, x, y, 48)
        a("v_mul_f32 v%d, s68, v%d" % (x, x))
        a("v_mul_f32 v%d, s68, v%d" % (y, y))
        round_bf16_pair(a, x, y, 48)
    a("v_mov_b32 v48, s74")
    for r in range(4):
        a("v_cndmask_b32 v%d, v%d, v48, s[72:73]" % (28 + r, 28 + r))
    a("v_max3_f32 v49, v28, v29, v30")
    a("v_max3_f32 v49, v49, v31, v36")
    a("v_max3_f32 v49, v49, v37, v38")
    a("v_max3_f32 v49, v49, v39, v76")
    a("v_max3_f32 v49, v49, v77, v78")
    a("v_max_f32 v49, v49, v79")
    xlane_reduce(a, 49, 50, "v_max_f32")
    for x in S:
        a("v_sub_f32 v%d, v%d, v49" % (x, x))
        a("v_mul_f32 v%d, s69, v%d" % (x, x))
        a("v_exp_f32 v%d, v%d" % (x, x))
    a("s_nop 0")
    a("v_add_f32 v49, v28, v29")
    for x in S[2:]:
        a("v_add_f32 v49, v49, v%d" % x)
    xlane_reduce(a, 49, 50, "v_add_f32")
    a("v_rcp_f32 v49, v49")
    a("s_nop 0")
    for x in S:
        a("v_mul_f32 v%d, v%d, v49" % (x, x))
    a("v_cvt_pk_bf16_f32 v24, v36, v37")
    a("v_cvt_pk_bf16_f32 v25, v38, v39")
    a("v_cvt_pk_bf16_f32 v26, v76, v77")
    a("v_cvt_pk_bf16_f32 v27, v78, v79")
    a("v_cvt_pk_bf16_f32 v32, v28, v29")
    a("v_cvt_pk_bf16_f32 v33, v30, v31")
    a("v_cvt_pk_bf16_f32 v40, v40, v41")
    a("v_cvt_pk_bf16_f32 v41, v42, v43")
    a("v_cvt_pk_bf16_f32 v44, v44, v45")
    a("v_cvt_pk_bf16_f32 v45, v46, v47")
    a("s_mov_b32 exec_hi, 0")
    a("buffer_store_dwordx2 v[40:41], v21, s[60:63], s65 offen sc1")
    a("buffer_store_dwordx2 v[44:45], v21, s[60:63], s65 offen offset:256 sc1")
    a("s_mov_b64 exec, -1")
    a("s_nop 1")
    a("v_mfma_f32_16x16x32_bf16 v[48:51], v[68:71], v[24:27], 0")
    a("v_mfma_f32_16x16x32_bf16 v[52:55], v[72:75], v[24:27], 0")
    a("s_nop 7")
    a("v_mfma_f32_16x16x16_bf16 v[48:51], v[40:41], v[32:33], v[48:51]")
    a("v_mfma_f32_16x16x16_bf16 v[52:55], v[44:45], v[32:33], v[52:55]")
    a("s_nop 7")
    a("s_nop 3")
    a("v_cvt_pk_bf16_f32 v48, v48, v49")
    a("v_cvt_pk_bf16_f32 v49, v50, v51")
    a("v_cvt_pk_bf16_f32 v52, v52, v53")
    a("v_cvt_pk_bf16_f32 v53, v54, v55")
    a("ds_write_b64 v14, v[48:49]")
    a("ds_write_b64 v14, v[52:53] offset:32")
    a("s_waitcnt lgkmcnt(0)")
    a("s_barrier")
    for ke in range(4):
        a("ds_read_b128 %s, v15 offset:%d" % (vr(24 + 4 * ke, 4), ke * 64))
    a("s_and_b32 s65, s64, 1")
    a("s_mul_i32 s65, s65, %d" % (72 * 8192))
    for t in range(9):
        for ke in range(4):
            a("ds_read_b128 %s, v16 offset:%d" % (vr(40 + 4 * ke, 4), (t * 4 + ke) * 1024))
        a("s_waitcnt lgkmcnt(0)")
        acc = 56 + 4 * (t % 2)
        a("v_mfma_f32_16x16x32_bf16 %s, v[40:43], v[24:27], 0" % vr(acc, 4))
        for ke in range(1, 4):
            a("v_mfma_f32_16x16x32_bf16 %s, %s, %s, %s" % (vr(acc, 4), vr(40 + 4 * ke, 4), vr(24 + 4 * ke, 4), vr(acc, 4)))
        a("s_nop 7")
        a("s_nop 1")
        for r in range(4):
            a("v_min_u32 v%d, 0xfffffffe, v%d" % (acc + r, acc + r))
        a("buffer_store_dwordx4 %s, v17, s[44:47], s65 offen%s" % (vr(acc, 4), sc))
        a("s_add_u32 s65, s65, 16384")
    a("s_cmp_eq_u32 s39, -1")
    a("s_cbranch_scc1 %s_nored" % pfx)
    a("s_and_b32 s65, s64, 1")
    a("s_mul_i32 s65, s65, 72")
    a("s_add_u32 s65, s65, s39")
    a("s_lshl_b32 s65, s65, 13")
    a("s_mov_b32 s67, 0")
    pr = pfx + "_pollr"
    a.lab(pr)
    for q in range(4):
        a("buffer_load_dwordx4 %s, v18, s[44:47], s65 offen offset:%d sc1" % (vr(24 + 4 * q, 4), q * 1024))
    a("s_add_u32 s66, s65, 4096")
    for q in range(4):
        a("buffer_load_dwordx4 %s, v18, s[44:47], s66 offen offset:%d sc1" % (vr(40 + 4 * q, 4), q * 1024))
    a("s_waitcnt vmcnt(0)")
    a("v_max3_u32 v76, v24, v25, v26")
    for r in range(27, 55, 2):
        a("v_max3_u32 v76, v76, v%d, v%d" % (r, r + 1))
    a("v_max_u32 v76, v76, v55")
    a("v_cmp_eq_u32 vcc, -1, v76")
    a("s_add_u32 s67, s67, 1")
    a("s_cmp_ge_u32 s67, 0x100000")
    a("s_cbranch_scc1 %s_pr_done" % pfx)
    a("s_cbranch_vccnz %s" % pr)
    a.lab("%s_pr_done" % pfx)
    for r in range(4):
        for q in range(1, 8):
            a("v_add_f32 v%d, v%d, v%d" % (24 + r, 24 + r, 24 + 4 * q + r))
    for r in range(4):
        xlane_reduce(a, 24 + r, 28, "v_add_f32")
    a("v_cvt_pk_bf16_f32 v24, v24, v25")
    a("v_cvt_pk_bf16_f32 v25, v26, v27")
    a("v_min_u32 v24, 0xfffffffe, v24")
    a("v_min_u32 v25, 0xfffffffe, v25")
    a("s_add_u32 s67, s64, 1")
    a("s_mul_i32 s67, s67, 9216")
    a("s_lshl_b32 s70, s39, 7")
    a("s_add_u32 s67, s67, s70")
    a("s_mov_b32 exec_lo, 0xffff\ns_mov_b32 exec_hi, 0")
    a("buffer_store_dwordx2 v[24:25], v19, s[40:43], s67 offen%s" % sc)
    a("s_mov_b64 exec, -1")
    a("v_mov_b32 v28, -1\nv_mov_b32 v29, -1\nv_mov_b32 v30, -1\nv_mov_b32 v31, -1")
    for q in range(4):
        a("buffer_store_dwordx4 v[28:31], v18, s[44:47], s65 offen offset:%d%s" % (q * 1024, sc))
    for q in range(4):
        a("buffer_store_dwordx4 v[28:31], v18, s[44:47], s66 offen offset:%d%s" % (q * 1024, sc))
    a.lab("%s_nored" % pfx)
    a("s_add_u32 s64, s64, 1")
    a("s_cmp_lt_u32 s64, %d" % nsteps)
    a("s_cbranch_scc1 %s" % top)

def k2(a):
    name = "k2_kernel"
    kernel_begin(a, name)
    a("s_cmp_ge_u32 s2, 32")
    a("s_cbranch_scc1 K2_done")
    load_args(a)
    a("s_mov_b32 s36, s2")
    chain_prologue(a)
    chain_consts(a)
    chain_loop(a, " sc1")
    a("s_waitcnt vmcnt(0)")
    a.lab("K2_done")
    a("s_endpgm")
    return name, 32, 163840
```

```python
import sys

NAME = "gated_mix__memory_aug_recurrent_mem_tr__sliding_block__prompt"

MB = 1 << 20
WS_QA   = 0 * MB
WS_KA   = 16 * MB
WS_VTA  = 32 * MB
WS_QKB  = 48 * MB
WS_VTB  = 53 * MB
WS_MEM  = 56 * MB
WS_PART = 57 * MB
WS_KM   = 60 * MB
WS_VMT  = 64 * MB
WS_OA   = 68 * MB
WS_OB   = 84 * MB
WS_G    = 87 * MB
SENT = 0xFFFFFFFF

class A:
    def __init__(s):
        s.L = []
        s.n = 0
    def __call__(s, t):
        for line in t.strip("\n").split("\n"):
            s.L.append("    " + line.strip())
    def lab(s, name):
        s.L.append(name + ":")
    def newlab(s, p="L"):
        s.n += 1
        return "%s_%d" % (p, s.n)
    def text(s):
        return "\n".join(s.L) + "\n"

def vr(b, n=1):
    return "v%d" % b if n == 1 else "v[%d:%d]" % (b, b + n - 1)
def ar(b, n=1):
    return "a%d" % b if n == 1 else "a[%d:%d]" % (b, b + n - 1)
def sr(b, n=1):
    return "s%d" % b if n == 1 else "s[%d:%d]" % (b, b + n - 1)

def kernel_begin(a, name):
    a.L.append(".p2align 8")
    a.L.append(".globl %s" % name)
    a.L.append(".type %s,@function" % name)
    a.lab(name)

def kd(name, vgpr=512, sgpr=102, accum=256):
    return """.section .rodata,"a"
.p2align 6
.amdhsa_kernel %s
  .amdhsa_next_free_vgpr %d
  .amdhsa_next_free_sgpr %d
  .amdhsa_accum_offset %d
  .amdhsa_group_segment_fixed_size 0
  .amdhsa_kernarg_size 112
  .amdhsa_user_sgpr_count 2
  .amdhsa_user_sgpr_kernarg_segment_ptr 1
  .amdhsa_system_sgpr_workgroup_id_x 1
.end_amdhsa_kernel
.text
""" % (name, vgpr, sgpr, accum)

def srd(a, d, base, nbytes, off=0):
    if off:
        a("s_add_u32 s%d, s%d, 0x%x" % (d, base, off))
        a("s_addc_u32 s%d, s%d, 0" % (d + 1, base + 1))
    else:
        a("s_mov_b32 s%d, s%d" % (d, base))
        a("s_mov_b32 s%d, s%d" % (d + 1, base + 1))
    a("s_mov_b32 s%d, 0x%x" % (d + 2, nbytes))
    a("s_mov_b32 s%d, 0x00020000" % (d + 3))

def load_args(a):
    a("s_load_dwordx16 s[8:23], s[0:1], 0")
    a("s_load_dwordx8 s[24:31], s[0:1], 64")
    a("s_load_dwordx4 s[32:35], s[0:1], 96")
    a("s_waitcnt lgkmcnt(0)")

class Gemm:
    def __init__(s, TM, TN, K, ldx, ldw, transposed, vbase=8, lds0=0):
        s.TM, s.TN, s.K, s.ldx, s.ldw, s.tr = TM, TN, K, ldx, ldw, transposed
        s.BM, s.BN = 32 * TM, 32 * TN
        s.XS = 144
        s.WS = s.BN * 2 + 32
        s.xsz = s.BM * s.XS
        s.wsz = 64 * s.WS
        s.stage = s.xsz + s.wsz
        s.lds0 = lds0
        s.nxl = s.BM * 8 // 256
        s.nwl = 64 * (s.BN // 8) // 256
        assert 64 * (s.BN // 8) % 256 == 0
        v = vbase
        s.vxg = v; v += s.nxl
        s.vwg = v; v += s.nwl
        s.vxl = v; v += s.nxl
        s.vwl = v; v += s.nwl
        s.vxr = v; v += 1
        s.vwr = v; v += 1
        v = (v + 3) & ~3
        s.vst = v; v += 4 * (s.nxl + s.nwl)
        s.vxf = v; v += 4 * TM
        s.vwf = v; v += 4 * TN
        s.acc = v; v += 4 * TM * TN
        s.vend = v
    def setup(s, a, vt):
        t0, t1, t2 = vt, vt + 1, vt + 2
        for i in range(s.nxl):
            a("v_lshrrev_b32 v%d, 3, v0" % t0)
            a("v_add_u32 v%d, %d, v%d" % (t0, 32 * i, t0))
            a("v_and_b32 v%d, 7, v0" % t1)
            a("v_mul_u32_u24 v%d, %d, v%d" % (t2, s.ldx, t0))
            a("v_lshl_add_u32 v%d, v%d, 4, v%d" % (s.vxg + i, t1, t2))
            a("v_mul_u32_u24 v%d, %d, v%d" % (t2, s.XS, t0))
            a("v_lshl_add_u32 v%d, v%d, 4, v%d" % (s.vxl + i, t1, t2))
            if s.lds0:
                a("v_add_u32 v%d, %d, v%d" % (s.vxl + i, s.lds0, s.vxl + i))
        cpr = s.BN // 8
        for i in range(s.nwl):
            a("v_add_u32 v%d, %d, v0" % (t0, 256 * i))
            if cpr & (cpr - 1) == 0:
                sh = cpr.bit_length() - 1
                a("v_lshrrev_b32 v%d, %d, v%d" % (t1, sh, t0))
                a("v_and_b32 v%d, %d, v%d" % (t0, cpr - 1, t0))
            else:
                magic = (1 << 20) // cpr + 1
                a("v_mul_u32_u24 v%d, %d, v%d" % (t1, magic, t0))
                a("v_lshrrev_b32 v%d, 20, v%d" % (t1, t1))
                a("v_mul_u32_u24 v%d, %d, v%d" % (t2, cpr, t1))
                a("v_sub_u32 v%d, v%d, v%d" % (t0, t0, t2))
                for c in range(256 * i, 256 * i + 256):
                    assert (c * magic) >> 20 == c // cpr
            a("v_mul_u32_u24 v%d, %d, v%d" % (t2, s.ldw, t1))
            a("v_lshl_add_u32 v%d, v%d, 4, v%d" % (s.vwg + i, t0, t2))
            a("v_mul_u32_u24 v%d, %d, v%d" % (t2, s.WS, t1))
            a("v_lshl_add_u32 v%d, v%d, 4, v%d" % (s.vwl + i, t0, t2))
            a("v_add_u32 v%d, %d, v%d" % (s.vwl + i, s.lds0 + s.xsz, s.vwl + i))
        a("v_lshrrev_b32 v%d, 6, v0" % t0)
        a("v_and_b32 v%d, 63, v0" % t1)
        a("v_lshrrev_b32 v%d, 1, v%d" % (t2, t0))
        a("v_mul_u32_u24 v%d, %d, v%d" % (t2, 16 * s.TM, t2))
        a("v_and_b32 v%d, 15, v%d" % (s.vxr, t1))
        a("v_add_u32 v%d, v%d, v%d" % (t2, t2, s.vxr))
        a("v_mul_u32_u24 v%d, %d, v%d" % (t2, s.XS, t2))
        a("v_lshrrev_b32 v%d, 4, v%d" % (s.vxr, t1))
        a("v_lshl_add_u32 v%d, v%d, 4, v%d" % (s.vxr, s.vxr, t2))
        if s.lds0:
            a("v_add_u32 v%d, %d, v%d" % (s.vxr, s.lds0, s.vxr))
        a("v_lshrrev_b32 v%d, 4, v%d" % (t2, t1))
        a("v_lshlrev_b32 v%d, 3, v%d" % (t2, t2))
        a("v_bfe_u32 v%d, v%d, 2, 2" % (s.vwr, t1))
        a("v_add_u32 v%d, v%d, v%d" % (t2, t2, s.vwr))
        a("v_mul_u32_u24 v%d, %d, v%d" % (t2, s.WS, t2))
        a("v_and_b32 v%d, 1, v%d" % (t0, t0))
        a("v_mul_u32_u24 v%d, %d, v%d" % (t0, 32 * s.TN, t0))
        a("v_add_u32 v%d, v%d, v%d" % (t2, t2, t0))
        a("v_and_b32 v%d, 3, v%d" % (t0, t1))
        a("v_lshl_add_u32 v%d, v%d, 3, v%d" % (s.vwr, t0, t2))
        a("v_add_u32 v%d, %d, v%d" % (s.vwr, s.lds0 + s.xsz, s.vwr))
    def gload(s, a):
        for i in range(s.nxl):
            a("buffer_load_dwordx4 %s, v%d, s[40:43], s48 offen" % (vr(s.vst + 4 * i, 4), s.vxg + i))
        for i in range(s.nwl):
            a("buffer_load_dwordx4 %s, v%d, s[44:47], s49 offen" % (vr(s.vst + 4 * (s.nxl + i), 4), s.vwg + i))
        a("s_add_u32 s48, s48, 128")
        a("s_add_u32 s49, s49, 0x%x" % (64 * s.ldw))
    def lwrite(s, a, buf):
        off = buf * s.stage
        for i in range(s.nxl):
            a("ds_write_b128 v%d, %s offset:%d" % (s.vxl + i, vr(s.vst + 4 * i, 4), off))
        for i in range(s.nwl):
            a("ds_write_b128 v%d, %s offset:%d" % (s.vwl + i, vr(s.vst + 4 * (s.nxl + i), 4), off))
    def compute(s, a, buf):
        off = buf * s.stage
        for ks in range(2):
            for i in range(s.TM):
                a("ds_read_b128 %s, v%d offset:%d" % (vr(s.vxf + 4 * i, 4), s.vxr, off + i * 16 * s.XS + ks * 64))
            for j in range(s.TN):
                a("ds_read_b64_tr_b16 %s, v%d offset:%d" % (vr(s.vwf + 4 * j, 2), s.vwr, off + ks * 32 * s.WS + j * 32))
                a("ds_read_b64_tr_b16 %s, v%d offset:%d" % (vr(s.vwf + 4 * j + 2, 2), s.vwr, off + (ks * 32 + 4) * s.WS + j * 32))
            a("s_waitcnt lgkmcnt(0)")
            for i in range(s.TM):
                for j in range(s.TN):
                    c = vr(s.acc + 4 * (i * s.TN + j), 4)
                    xf, wf = vr(s.vxf + 4 * i, 4), vr(s.vwf + 4 * j, 4)
                    if s.tr:
                        a("v_mfma_f32_16x16x32_bf16 %s, %s, %s, %s" % (c, wf, xf, c))
                    else:
                        a("v_mfma_f32_16x16x32_bf16 %s, %s, %s, %s" % (c, xf, wf, c))
    def run(s, a):
        assert 2 * s.stage + s.lds0 <= 160 * 1024
        assert s.stage + 36 * s.WS + s.TN * 32 < 65536 and s.stage + s.TM * 16 * s.XS + 64 < 65536
        for r in range(4 * s.TM * s.TN):
            a("v_mov_b32 v%d, 0" % (s.acc + r))
        a("s_mov_b32 s48, 0")
        a("s_mov_b32 s49, 0")
        nst = s.K // 64
        s.gload(a)
        a("s_waitcnt vmcnt(0)")
        a("s_barrier")
        s.lwrite(a, 0)
        a("s_waitcnt lgkmcnt(0)")
        a("s_barrier")
        a("s_mov_b32 s50, %d" % (nst - 1))
        lp = a.newlab("GL")
        done = a.newlab("GD")
        done2 = a.newlab("GD")
        a.lab(lp)
        a("s_cmp_eq_u32 s50, 0")
        a("s_cbranch_scc1 %s" % done)
        s.gload(a)
        s.compute(a, 0)
        a("s_waitcnt vmcnt(0)")
        s.lwrite(a, 1)
        a("s_waitcnt lgkmcnt(0)")
        a("s_barrier")
        a("s_sub_u32 s50, s50, 1")
        a("s_cmp_eq_u32 s50, 0")
        a("s_cbranch_scc1 %s" % done2)
        s.gload(a)
        s.compute(a, 1)
        a("s_waitcnt vmcnt(0)")
        s.lwrite(a, 0)
        a("s_waitcnt lgkmcnt(0)")
        a("s_barrier")
        a("s_sub_u32 s50, s50, 1")
        a("s_branch %s" % lp)
        end = a.newlab("GE")
        a.lab(done)
        s.compute(a, 0)
        a("s_branch %s" % end)
        a.lab(done2)
        s.compute(a, 1)
        a.lab(end)
        a("s_nop 7")
        a("s_nop 7")
    def store_bf16(s, a, srdreg, ldo, vt):
        t0, t1, t2, t3 = vt, vt + 1, vt + 2, vt + 3
        a("v_lshrrev_b32 v%d, 6, v0" % t0)
        a("v_and_b32 v%d, 63, v0" % t1)
        a("v_lshrrev_b32 v%d, 1, v%d" % (t2, t0))
        a("v_and_b32 v%d, 1, v%d" % (t0, t0))
        a("v_mul_u32_u24 v%d, %d, v%d" % (t2, 16 * s.TM, t2))
        a("v_mul_u32_u24 v%d, %d, v%d" % (t0, 16 * s.TN, t0))
        a("v_and_b32 v%d, 15, v%d" % (t3, t1))
        a("v_lshrrev_b32 v%d, 4, v%d" % (t1, t1))
        a("v_lshlrev_b32 v%d, 2, v%d" % (t1, t1))
        if s.tr:
            a("v_add_u32 v%d, v%d, v%d" % (t2, t2, t3))
            a("v_add_u32 v%d, v%d, v%d" % (t0, t0, t1))
            a("v_mul_u32_u24 v%d, %d, v%d" % (t2, ldo, t2))
            a("v_lshl_add_u32 v%d, v%d, 1, v%d" % (t3, t0, t2))
        else:
            a("v_add_u32 v%d, v%d, v%d" % (t0, t0, t3))
            a("v_add_u32 v%d, v%d, v%d" % (t2, t2, t1))
            a("v_mul_u32_u24 v%d, %d, v%d" % (t0, ldo, t0))
            a("v_lshl_add_u32 v%d, v%d, 1, v%d" % (t3, t2, t0))
        for i in range(s.TM):
            for j in range(s.TN):
                c = s.acc + 4 * (i * s.TN + j)
                a("v_cvt_pk_bf16_f32 v%d, v%d, v%d" % (c, c, c + 1))
                a("v_cvt_pk_bf16_f32 v%d, v%d, v%d" % (c + 1, c + 2, c + 3))
                if s.tr:
                    so = i * 16 * ldo; io = j * 32
                else:
                    so = j * 16 * ldo; io = i * 32
                a("s_mov_b32 s51, 0x%x" % so)
                a("buffer_store_dwordx2 %s, v%d, %s, s51 offen offset:%d" % (vr(c, 2), t3, sr(srdreg, 4), io))

def k1(a):
    name = "k1_kernel"
    kernel_begin(a, name)
    NT = 1536 + 144
    a("s_cmp_ge_u32 s2, %d" % NT)
    a("s_cbranch_scc1 K1_done")
    load_args(a)
    a("s_cmp_ge_u32 s2, 1536")
    a("s_cbranch_scc1 K1_B")
    a("s_lshr_b32 s36, s2, 9")
    a("s_and_b32 s37, s2, 15")
    a("s_bfe_u32 s38, s2, 0x50004")
    a("s_mul_i32 s39, s37, %d" % (128 * 1152))
    a("s_add_u32 s40, s8, s39")
    a("s_addc_u32 s41, s9, 0")
    a("s_mov_b32 s42, %d" % (128 * 1152))
    a("s_mov_b32 s43, 0x00020000")
    a("s_cmp_eq_u32 s36, 0")
    a("s_cselect_b32 s44, s12, s14")
    a("s_cselect_b32 s45, s13, s15")
    a("s_cmp_eq_u32 s36, 2")
    a("s_cselect_b32 s44, s16, s44")
    a("s_cselect_b32 s45, s17, s45")
    a("s_lshl_b32 s39, s38, 8")
    a("s_add_u32 s44, s44, s39")
    a("s_addc_u32 s45, s45, 0")
    a("s_sub_u32 s46, %d, s39" % (576 * 8192))
    a("s_mov_b32 s47, 0x00020000")
    a("s_cmp_eq_u32 s36, 2")
    a("s_cbranch_scc1 K1_V")
    g = Gemm(4, 4, 576, 1152, 8192, True)
    g.setup(a, 1)
    g.run(a)
    a("s_lshl_b32 s39, s36, 24")
    a("s_lshl_b32 s52, s37, 20")
    a("s_add_u32 s39, s39, s52")
    a("s_lshl_b32 s52, s38, 8")
    a("s_add_u32 s39, s39, s52")
    a("s_add_u32 s52, s34, s39")
    a("s_addc_u32 s53, s35, 0")
    a("s_mov_b32 s54, 0x%x" % (128 * 8192))
    a("s_mov_b32 s55, 0x00020000")
    g.store_bf16(a, 52, 8192, 1)
    a("s_branch K1_done")
    a.lab("K1_V")
    g = Gemm(4, 4, 576, 1152, 8192, False)
    g.setup(a, 1)
    g.run(a)
    a("s_lshl_b32 s39, s38, 19")
    a("s_lshl_b32 s52, s37, 8")
    a("s_add_u32 s39, s39, s52")
    a("s_add_u32 s39, s39, 0x%x" % WS_VTA)
    a("s_add_u32 s52, s34, s39")
    a("s_addc_u32 s53, s35, 0")
    a("s_mov_b32 s54, 0x%x" % (128 * 4096))
    a("s_mov_b32 s55, 0x00020000")
    g.store_bf16(a, 52, 4096, 1)
    a("s_branch K1_done")
    a.lab("K1_B")
    a("s_sub_u32 s36, s2, 1536")
    a("s_and_b32 s37, s36, 15")
    a("s_lshr_b32 s38, s36, 4")
    a("s_mul_i32 s39, s37, %d" % (128 * 1152))
    a("s_add_u32 s40, s8, s39")
    a("s_addc_u32 s41, s9, 0")
    a("s_mov_b32 s42, %d" % (128 * 1152))
    a("s_mov_b32 s43, 0x00020000")
    a("s_mul_i32 s39, s38, 384")
    a("s_add_u32 s44, s24, s39")
    a("s_addc_u32 s45, s25, 0")
    a("s_sub_u32 s46, %d, s39" % (576 * 3456))
    a("s_mov_b32 s47, 0x00020000")
    a("s_cmp_ge_u32 s38, 6")
    a("s_cbranch_scc1 K1_BV")
    g = Gemm(4, 6, 576, 1152, 3456, True)
    g.setup(a, 1)
    g.run(a)
    a("s_mul_i32 s39, s37, %d" % (128 * 2304))
    a("s_mul_i32 s52, s38, 384")
    a("s_add_u32 s39, s39, s52")
    a("s_add_u32 s39, s39, 0x%x" % WS_QKB)
    a("s_add_u32 s52, s34, s39")
    a("s_addc_u32 s53, s35, 0")
    a("s_mov_b32 s54, 0x%x" % (128 * 2304))
    a("s_mov_b32 s55, 0x00020000")
    g.store_bf16(a, 52, 2304, 1)
    a("s_branch K1_done")
    a.lab("K1_BV")
    g = Gemm(4, 6, 576, 1152, 3456, False)
    g.setup(a, 1)
    g.run(a)
    a("s_sub_u32 s39, s38, 6")
    a("s_mul_i32 s39, s39, %d" % (192 * 4096))
    a("s_lshl_b32 s52, s37, 8")
    a("s_add_u32 s39, s39, s52")
    a("s_add_u32 s39, s39, 0x%x" % WS_VTB)
    a("s_add_u32 s52, s34, s39")
    a("s_addc_u32 s53, s35, 0")
    a("s_mov_b32 s54, 0x%x" % (192 * 4096))
    a("s_mov_b32 s55, 0x00020000")
    g.store_bf16(a, 52, 4096, 1)
    a.lab("K1_done")
    a("s_endpgm")
    return name, NT, 2 * Gemm(4, 6, 576, 1152, 3456, True).stage

def main(out):
    a = A()
    launches = []
    kds = []
    n, g, lds = k1(a); launches.append((n, g, lds)); kds.append(kd(n, 256, 102, 256))
    hdr = "".join("; @launch kernel=%s grid=(%d,1,1) block=(256,1,1) lds=%d\n" % l for l in launches)
    txt = hdr + '.amdgcn_target "amdgcn-amd-amdhsa--gfx950"\n.text\n' + a.text() + "".join(kds)
    open(out, "w").write(txt)

if __name__ == "__main__":
    main(sys.argv[1] if len(sys.argv) > 1 else "k.s")
```

```python
import sys
from gen import *
import chain, attn
def main(out):
    a = A()
    launches = []; kds = []
    def add(fn, vg=256, acc=256):
        n, g, lds = fn(a); launches.append((n, g, lds)); kds.append(kd(n, vg, 102, acc))
    add(chain.k0, 64, 64)
    add(k1)
    add(chain.k2, 512, 256)
    add(attn.k3)
    add(attn.k4)
    hdr = "".join("; @launch kernel=%s grid=(%d,1,1) block=(256,1,1) lds=%d\n" % l for l in launches)
    txt = hdr + '.amdgcn_target "amdgcn-amd-amdhsa--gfx950"\n.text\n' + a.text() + "".join(kds)
    open(out, "w").write(txt)
main(sys.argv[1] if len(sys.argv) > 1 else "k.s")
```
